```python
import torch

def _softmax(x, axis=-1):
    return torch.softmax(x, dim=axis)

def _gelu(x):
    return torch.nn.functional.gelu(x, approximate='tanh')

def _silu(x):
    return torch.nn.functional.silu(x)

def _sigmoid(x):
    return torch.sigmoid(x)

def _layernorm(x, axis=-1, eps=1e-05):
    m = x.mean(dim=axis, keepdim=True)
    v = x.var(dim=axis, keepdim=True, unbiased=False)
    return (x - m) / torch.sqrt(v + eps)

def _scatter_add(tgt, idx, src, axis=0):
    return tgt.clone().index_add_(axis, idx, src)

def _segment_sum(src, seg, n):
    out = torch.zeros((n,) + src.shape[1:], dtype=src.dtype)
    return out.index_add_(0, seg, src)

def _pad(x, pw):
    flat = tuple((v for pair in reversed(pw) for v in pair))
    return torch.nn.functional.pad(x, flat)
kernel_name = 'standalone__autoregressive_conv_wavenet__speech'

def setup_inputs():

    _w = lambda a: (lambda t: t.to(torch.bfloat16) if t.is_floating_point() else t)(torch.as_tensor(a))
    B, T, D, K = (2, 4000, 256, 31)
    return {'x': _w((lambda *s: torch.randn(*s, dtype=torch.bfloat16) * 0.1)(B, T, D)), 'w': _w((lambda *s: torch.randn(*s, dtype=torch.bfloat16) * 0.1)(K, D, 2 * D)), 'w_o': _w((lambda *s: torch.randn(*s, dtype=torch.bfloat16) * 0.05)(D, D))}

def reference(x, w, w_o):
    B, T, D = x.shape
    K = w.shape[0]
    dil = 2
    pad = (K - 1) * dil
    xp = _pad(x, ((0, 0), (pad, 0), (0, 0)))
    h = torch.einsum('btc,cd->btd', xp[:, pad:pad + T, :], w[0])
    for i in range(1, K):
        off = pad - i * dil
        h = h + torch.einsum('btc,cd->btd', xp[:, off:off + T, :], w[i])
    f = h[..., :D].clone()
    g = h[..., D:].clone()
    z = torch.tanh(f) * _sigmoid(g)
    return z @ w_o
```

```python
class Asm:
    def __init__(self):
        self.lines = []
        self.uid = 0
    def __call__(self, s):
        for ln in s.split("\n"):
            ln = ln.strip()
            if ln:
                self.lines.append("    " + ln if not ln.endswith(":") else ln)
    def label(self, name):
        self.lines.append(name + ":")
    def newlabel(self, base):
        self.uid += 1
        return f"L_{base}_{self.uid}"
    def comment(self, s):
        self.lines.append("    ; " + s)
    def text(self):
        return "\n".join(self.lines) + "\n"

class LgkmTracker:
    def __init__(self, asm):
        self.asm = asm
        self.issued = 0
        self.done = 0
    def issue(self, instr):
        if self.issued - self.done >= 15:
            self.wait_for(self.issued - 15)
        self.asm(instr)
        idx = self.issued
        self.issued += 1
        return idx
    def wait_for(self, idx):
        if idx is None or idx < self.done:
            return
        n = self.issued - 1 - idx
        assert n <= 15
        self.asm(f"s_waitcnt lgkmcnt({n})")
        self.done = idx + 1
    def wait_all(self):
        if self.done < self.issued:
            self.asm("s_waitcnt lgkmcnt(0)")
            self.done = self.issued
    def reset_unknown(self, outstanding):
        self.done = self.issued - outstanding

def kernel_header(a, name):
    a.lines.append(f".globl {name}")
    a.lines.append(".p2align 8")
    a.lines.append(f".type {name},@function")
    a.lines.append(f"{name}:")

def kernel_desc(name, vgpr, sgpr, accum):
    return f""".amdhsa_kernel {name}
  .amdhsa_next_free_vgpr {vgpr}
  .amdhsa_next_free_sgpr {sgpr}
  .amdhsa_accum_offset {accum}
  .amdhsa_group_segment_fixed_size 0
  .amdhsa_kernarg_size 48
  .amdhsa_user_sgpr_count 2
  .amdhsa_user_sgpr_kernarg_segment_ptr 1
  .amdhsa_system_sgpr_workgroup_id_x 1
.end_amdhsa_kernel
"""
```

```python
from asmlib import *
import k2

def emit_combine(a, A, B, C, o0, o1, o2, t):
    for d in range(4):
        al, ah, bl, bh, cl, ch, sl, sh, e0, e1 = [t + i for i in range(10)]
        a(f"v_lshlrev_b32 v{al}, 16, v{A+d}")
        a(f"v_and_b32 v{ah}, 0xffff0000, v{A+d}")
        a(f"v_lshlrev_b32 v{bl}, 16, v{B+d}")
        a(f"v_and_b32 v{bh}, 0xffff0000, v{B+d}")
        a(f"v_lshlrev_b32 v{cl}, 16, v{C+d}")
        a(f"v_and_b32 v{ch}, 0xffff0000, v{C+d}")
        a(f"v_add_f32 v{sl}, v{al}, v{cl}")
        a(f"v_add_f32 v{sh}, v{ah}, v{ch}")
        a(f"v_add_f32 v{e0}, v{sl}, v{bl}")
        a(f"v_add_f32 v{e1}, v{sh}, v{bh}")
        a(f"v_cvt_pk_bf16_f32 v{o0+d}, v{e0}, v{e1}")
        a(f"v_sub_f32 v{e0}, v{sl}, v{bl}")
        a(f"v_sub_f32 v{e1}, v{sh}, v{bh}")
        a(f"v_cvt_pk_bf16_f32 v{o1+d}, v{e0}, v{e1}")
        a(f"v_fma_f32 v{e0}, 2.0, v{bl}, v{al}")
        a(f"v_fma_f32 v{e1}, 2.0, v{bh}, v{ah}")
        a(f"v_fma_f32 v{e0}, 4.0, v{cl}, v{e0}")
        a(f"v_fma_f32 v{e1}, 4.0, v{ch}, v{e1}")
        a(f"v_cvt_pk_bf16_f32 v{o2+d}, v{e0}, v{e1}")

def emit_k1(a, name):
    kernel_header(a, name)
    a("s_cmp_ge_u32 s2, 1040")
    a(f"s_cbranch_scc1 L_{name}_end")
    a("s_load_dwordx4 s[4:7], s[0:1], 0")
    a("s_load_dwordx2 s[8:9], s[0:1], 40")
    a("s_waitcnt lgkmcnt(0)")
    a("s_mov_b32 s20, s4\ns_mov_b32 s21, s5\ns_mov_b32 s22, 4096000\ns_mov_b32 s23, 0x20000")
    a("s_mov_b32 s24, s6\ns_mov_b32 s25, s7\ns_mov_b32 s26, 8126464\ns_mov_b32 s27, 0x20000")
    a(f"s_mov_b32 s28, s8\ns_mov_b32 s29, s9\ns_mov_b32 s30, {k2.XD_OFF + k2.XD_BYTES}\ns_mov_b32 s31, 0x20000")
    a("s_cmp_ge_u32 s2, 704")
    a(f"s_cbranch_scc1 L_{name}_x")
    a("s_lshr_b32 s10, s2, 6")
    a("s_and_b32 s11, s2, 63")
    a("s_lshl_b32 s11, s11, 12")
    a("v_lshlrev_b32 v1, 4, v0")
    a("v_add_u32 v1, s11, v1")
    a("s_mul_i32 s12, s10, 786432")
    a("s_sub_u32 s13, s12, 262144")
    a("s_cmp_eq_u32 s10, 0")
    a("s_cselect_b32 s13, 0x40000000, s13")
    a("s_add_u32 s14, s12, 262144")
    a("buffer_load_dwordx4 v[4:7], v1, s[24:27], s13 offen")
    a("buffer_load_dwordx4 v[8:11], v1, s[24:27], s12 offen")
    a("buffer_load_dwordx4 v[12:15], v1, s[24:27], s14 offen")
    a("s_waitcnt vmcnt(0)")
    emit_combine(a, 4, 8, 12, 16, 20, 24, 32)
    a("s_lshl_b32 s15, s10, 18")
    a(f"s_add_u32 s16, s15, {k2.WD_OFF}")
    a(f"s_add_u32 s17, s15, {k2.WD_OFF + 11 * 262144}")
    a(f"s_add_u32 s18, s15, {k2.WD_OFF + 22 * 262144}")
    a("buffer_store_dwordx4 v[16:19], v1, s[28:31], s16 offen")
    a("buffer_store_dwordx4 v[20:23], v1, s[28:31], s17 offen")
    a("buffer_store_dwordx4 v[24:27], v1, s[28:31], s18 offen")
    a("s_waitcnt vmcnt(0)")
    a("s_endpgm")
    a.label(f"L_{name}_x")
    a("s_sub_u32 s10, s2, 704")
    a("s_mul_i32 s11, s10, 781")
    a("s_lshr_b32 s11, s11, 16")
    a("s_mul_i32 s12, s11, 84")
    a("s_sub_u32 s12, s10, s12")
    a("s_lshl_b32 s12, s12, 3")
    a("v_lshrrev_b32 v1, 5, v0")
    a("v_add_u32 v1, s12, v1")
    a("v_and_b32 v2, 31, v0")
    a("v_lshlrev_b32 v2, 4, v2")
    a("s_lshr_b32 s13, s11, 1")
    a("s_and_b32 s14, s11, 1")
    a("s_mul_i32 s13, s13, 4000")
    for j in range(3):
        a("v_mul_u32_u24 v3, 6, v1")
        a(f"s_add_u32 s15, s14, {2*j}")
        a("v_add_u32 v3, s15, v3")
        a("s_mov_b32 s16, 4000")
        a("v_cmp_gt_u32 vcc, s16, v3")
        a("v_add_u32 v3, s13, v3")
        a("v_lshl_add_u32 v3, v3, 9, v2")
        a("v_mov_b32 v28, 0x40000000")
        a(f"v_cndmask_b32 v{29+j}, v28, v3, vcc")
    a("buffer_load_dwordx4 v[4:7], v29, s[20:23], 0 offen")
    a("buffer_load_dwordx4 v[8:11], v30, s[20:23], 0 offen")
    a("buffer_load_dwordx4 v[12:15], v31, s[20:23], 0 offen")
    a("s_waitcnt vmcnt(0)")
    emit_combine(a, 4, 8, 12, 16, 20, 24, 32)
    a("v_lshl_add_u32 v3, v1, 9, v2")
    a(f"s_mul_i32 s15, s11, {k2.XD_SEQ}")
    for i in range(3):
        a(f"s_add_u32 s16, s15, {k2.XD_OFF + i * 4 * k2.XD_SEQ}")
        a(f"buffer_store_dwordx4 v[{16+4*i}:{19+4*i}], v3, s[28:31], s16 offen")
    a("s_waitcnt vmcnt(0)")
    a.label(f"L_{name}_end")
    a("s_endpgm")
```

```python
from asmlib import *

Q = 6
U = 84
PF = 3
NS = Q + PF
XBUF = 14336
WBASE = 2 * XBUF
WGRP = 11 * 4096
LDS_BYTES = WBASE + 3 * WGRP
WD_OFF = 0
WD_BYTES = 33 * 262144
XD_OFF = WD_BYTES
XD_ROWS = 672
XD_SEQ = XD_ROWS * 512
XD_VALID = 667 * 512
XD_BYTES = 12 * XD_SEQ
ACT_OFF = 13 << 20
ACT_BYTES = 8000 * 1024
assert XD_OFF + XD_BYTES <= ACT_OFF

OPT = dict(noldsx=False, noldsw=False, nowload=False, nobar=False, noload=False, noxload=False, prio=None, lprio=None)
SF = [
    dict(name="A", tau=10, x=("raw", 0, 1), w=("raw", 2, 3)),
    dict(name="B", tau=10, x=("raw", 2, 0), w=("raw", 1, 3)),
    dict(name="C", tau=11, x=("der", 0), w=("der", 0)),
    dict(name="D", tau=11, x=("der", 1), w=("der", 1)),
    dict(name="E", tau=11, x=("der", 2), w=("der", 2)),
]
NCC = 4
PASSES = [(sf, cc, ks) for sf in range(5) for cc in range(NCC) for ks in range(2)]
NP = len(PASSES)
def tau_of(p):
    return SF[PASSES[p][0]]["tau"]

PSI = [0, 1, 2, 3, 8, 9, 10, 11, 12, 13, 14, 15, 4, 5, 6, 7]

V_X = {(s, ks): 2 + ks * 3 + s for s in range(3) for ks in range(2)}
V_WLANE, V_W0, V_W1 = 8, 9, 10
def WIN(setid, d):
    return 16 + setid * 36 + (d % NS) * 4
def WB(setid, a):
    return 88 + setid * 12 + (a % 3) * 4
def ACC(sf, j):
    return 128 + sf * 24 + j * 4
S_XD = 44
S_WG = 45
S_CC = 46

def xfrag_read(setid, ks, d):
    if d >= 0: rho, s = d, 0
    elif d >= -6: rho, s = d + 6, 1
    else: rho, s = d + 12, 2
    r = WIN(setid, d)
    return f"ds_read_b128 v[{r}:{r+3}], v{V_X[(s, ks)]} offset:{rho * 2304}"
def wfrag_reads(setid, a):
    r = WB(setid, a)
    vw = V_W0 if setid == 0 else V_W1
    return [f"ds_read_b64_tr_b16 v[{r}:{r+1}], v{vw} offset:{a * 4096}",
            f"ds_read_b64_tr_b16 v[{r+2}:{r+3}], v{vw} offset:{a * 4096 + 512}"]

class Pend:
    def __init__(self): self.idx = {}

def emit_next_setup(a, ks_next):
    vw = V_W0 if ks_next == 0 else V_W1
    a(f"v_add_u32 v{vw}, s{S_WG}, v{V_WLANE}")
    a(f"s_add_u32 s{S_WG}, s{S_WG}, {WGRP}")
    a(f"s_cmp_eq_u32 s{S_WG}, {WBASE + 3 * WGRP}")
    a(f"s_cselect_b32 s{S_WG}, {WBASE}, s{S_WG}")
    if ks_next == 0:
        a(f"s_sub_u32 s{S_XD}, 0, s{S_XD}")
    for s in range(3):
        v = V_X[(s, ks_next)]
        a(f"v_add_u32 v{v}, s{S_XD}, v{v}")

def next_pass_reads(setn, ksn):
    w0 = wfrag_reads(setn, 0); w1 = wfrag_reads(setn, 1)
    t3 = [(("x", 5), xfrag_read(setn, ksn, 5)), (("x", 4), xfrag_read(setn, ksn, 4)), (("x", 3), xfrag_read(setn, ksn, 3))]
    t2 = [(("w", 0, 0), w0[0]), (("w", 0, 1), w0[1]), (("x", 2), xfrag_read(setn, ksn, 2)), (("x", 1), xfrag_read(setn, ksn, 1)), (("x", 0), xfrag_read(setn, ksn, 0))]
    t1 = [(("w", 1, 0), w1[0]), (("w", 1, 1), w1[1]), (("x", -1), xfrag_read(setn, ksn, -1)), (("x", -2), xfrag_read(setn, ksn, -2))]
    return t3, t2, t1

def emit_pass(a, T, cur, sf, ks, tau, barrier=True):
    setc = ks; setn = 1 - ks; ksn = 1 - ks
    nxt = {}
    for t in range(tau):
        fill = []
        if t == tau - 3:
            last_x = cur.get(("x", -(tau - 1)))
            need = max(i for i in [last_x, cur.get(("w", tau - 4, 1))] if i is not None)
            T.wait_for(need)
            if barrier and not OPT["nobar"]:
                a("s_barrier")
            emit_next_setup(a, ksn)
        if t + 2 <= tau - 1:
            w = wfrag_reads(setc, t + 2)
            if ("w", t + 2, 0) not in cur:
                fill += [(cur, ("w", t + 2, 0), w[0]), (cur, ("w", t + 2, 1), w[1])]
        if t + PF <= tau - 1 and ("x", -(t + PF)) not in cur:
            fill.append((cur, ("x", -(t + PF)), xfrag_read(setc, ks, -(t + PF))))
        if t >= tau - 3:
            grp = next_pass_reads(setn, ksn)[t - (tau - 3)]
            fill += [(nxt, n, ins) for (n, ins) in grp]
        assert len(fill) <= Q, (t, len(fill))
        for jj, j in enumerate(range(Q - 1, -1, -1)):
            T.wait_for(cur[("w", t, 1)])
            T.wait_for(cur[("x", j - t)])
            A_ = WB(setc, t); B_ = WIN(setc, j - t); C_ = ACC(sf, j)
            a(f"v_mfma_f32_16x16x32_bf16 v[{C_}:{C_+3}], v[{A_}:{A_+3}], v[{B_}:{B_+3}], v[{C_}:{C_+3}]")
            if jj < len(fill):
                dct, name, ins = fill[jj]
                if (OPT["noldsx"] and name[0] == "x") or (OPT["noldsw"] and name[0] == "w"):
                    ins = "s_nop 0"
                    dct[name] = T.issue(ins); T.done = T.issued if False else T.done
                else:
                    dct[name] = T.issue(ins)
    return nxt

def emit_compute(a, dbg=False, stamps=False):
    T = LgkmTracker(a)
    a("v_and_b32 v1, 63, v0")
    a("v_and_b32 v11, 15, v1")
    a("v_lshrrev_b32 v12, 4, v1")
    a("v_add_u32 v13, 4, v11")
    a("v_cmp_gt_u32 vcc, 4, v11")
    a("s_nop 1")
    a("v_cndmask_b32 v13, v13, v11, vcc")
    a("v_subrev_u32 v14, 8, v11")
    a("v_cmp_lt_u32 vcc, 11, v11")
    a("s_nop 1")
    a("v_cndmask_b32 v13, v13, v14, vcc")
    for s in range(3):
        a(f"v_add_u32 v14, {2 - s}, v13")
        a("v_and_b32 v15, 6, v14")
        for ks in range(2):
            d = V_X[(s, ks)]
            a(f"v_add_u32 v{d}, {ks * 4}, v12")
            a(f"v_xor_b32 v{d}, v{d}, v15")
            a(f"v_lshlrev_b32 v{d}, 4, v{d}")
            a(f"v_lshl_add_u32 v{d}, v14, 7, v{d}")
            if ks == 1:
                a(f"v_add_u32 v{d}, {XBUF}, v{d}")
    a("v_lshrrev_b32 v14, 2, v11")
    a("v_lshl_add_u32 v14, v12, 3, v14")
    a("v_lshrrev_b32 v15, 1, v11")
    a("v_and_b32 v15, 1, v15")
    a("s_lshl_b32 s41, s16, 1")
    a("v_add_u32 v15, s41, v15")
    a(f"v_lshrrev_b32 v{V_WLANE}, 3, v11")
    a("v_and_b32 v9, 1, v12")
    a(f"v_lshl_or_b32 v{V_WLANE}, v9, 1, v{V_WLANE}")
    a(f"v_lshlrev_b32 v{V_WLANE}, 1, v{V_WLANE}")
    a(f"v_xor_b32 v15, v15, v{V_WLANE}")
    a("v_lshlrev_b32 v15, 4, v15")
    a("v_lshl_add_u32 v15, v14, 7, v15")
    a("v_and_b32 v14, 1, v11")
    a(f"v_lshl_add_u32 v{V_WLANE}, v14, 3, v15")
    a(f"v_add_u32 v{V_W0}, {WBASE}, v{V_WLANE}")
    a(f"s_mov_b32 s{S_WG}, {WBASE + WGRP}")
    a(f"s_mov_b32 s{S_XD}, {-XBUF & 0xffffffff}")
    for r in range(120):
        a(f"v_mov_b32 v{128 + r}, 0")
    a("s_barrier")
    t3, t2, t1 = next_pass_reads(0, 0)
    cur = {}
    for n, ins in t3 + t2 + t1:
        cur[n] = T.issue(ins)
    order0 = list(cur.keys())
    for sf in range(5):
        tau = SF[sf]["tau"]
        lab = f"L_sf{sf}"
        if stamps:
            a(f"s_memtime s[{76+2*sf}:{77+2*sf}]")
            T.issued += 2; T.done = T.issued - 2 - 12 if False else T.done
            a("s_waitcnt lgkmcnt(0)")
            T.done = T.issued
        a(f"s_mov_b32 s{S_CC}, {NCC}")
        a.label(lab)
        base = T.issued
        T.issued = base + len(order0)
        T.done = base
        cur = {n: base + i for i, n in enumerate(order0)}
        nx = emit_pass(a, T, cur, sf, 0, tau)
        nx2 = emit_pass(a, T, nx, sf, 1, tau)
        ks_ = sorted(nx2.values())
        assert list(nx2.keys()) == order0, (list(nx2.keys()), order0)
        span = T.issued - ks_[0]
        assert span <= 15
        a(f"s_sub_u32 s{S_CC}, s{S_CC}, 1")
        a(f"s_cmp_lg_u32 s{S_CC}, 0")
        a(f"s_cbranch_scc1 {lab}")
        SPAN.append((span, [nx2[n] - ks_[0] for n in order0]))
    T.wait_all()

SPAN = []
if __name__ == "__main__":
    a = Asm()
    emit_compute(a)
    print(SPAN)
    print(len(a.lines))

V_LW = 20
def V_LX(typ, k):
    return 24 + typ * 4 + k
S_XRAW, S_WRAW, S_WD, S_XDER, S_ACT = 20, 24, 28, 32, 36

def w_load(a, p, tap):
    sf, cc, ks = PASSES[p]
    w = SF[sf]["w"]
    chan = (cc * 64 + ks * 32) * 1024
    if w[0] == "raw":
        off = (w[1] + w[2] * tap) * 262144 + chan; srd = S_WRAW
    else:
        off = (w[1] * 11 + tap) * 262144 + chan; srd = S_WD
    lds = WBASE + (p % 3) * WGRP + tap * 4096
    a(f"s_add_u32 m0, s47, {lds}")
    a(f"s_add_u32 s42, s40, {off}")
    if not (OPT["noload"] or OPT["nowload"]) or p < 3:
        a(f"buffer_load_dwordx4 v{V_LW}, s[{srd}:{srd+3}], s42 offen lds")

def x_load(a, J, state):
    sf, cc = J // NCC, J % NCC
    x = SF[sf]["x"]
    buf = (J % 2) * XBUF
    if x[0] == "raw":
        typ = 0 if x[2] == 1 else 1
        soff = x[1] * 1024 + cc * 128; srd = S_XRAW
    else:
        typ = 2; soff = cc * 128; srd = S_XDER
        if state.get("xder") != x[1]:
            state["xder"] = x[1]
            a(f"s_mul_i32 s48, s12, {XD_SEQ}")
            a(f"s_add_u32 s48, s48, {XD_OFF + x[1] * 4 * XD_SEQ}")
            a(f"s_add_u32 s{S_XDER}, s8, s48")
            a(f"s_addc_u32 s{S_XDER+1}, s9, 0")
    a(f"s_mov_b32 s43, {soff}")
    for k in range(4):
        if k == 3:
            lab = a.newlabel("skipx")
            a("s_cmp_ge_u32 s49, 2")
            a(f"s_cbranch_scc1 {lab}")
        a(f"s_add_u32 m0, s47, {buf + k * 4096}")
        a("s_nop 0")
        if not (OPT["noload"] or OPT["noxload"]) or J < 2:
            a(f"buffer_load_dwordx4 v{V_LX(typ, k)}, s[{srd}:{srd+3}], s43 offen lds")
        if k == 3:
            a.label(lab)

def emit_loader(a):
    a("s_sub_u32 s49, s16, 4")
    a("s_lshl_b32 s47, s49, 10")
    a("s_lshl_b32 s40, s10, 7")
    a("v_and_b32 v1, 63, v0")
    a("v_lshrrev_b32 v2, 3, v1")
    a("v_and_b32 v3, 7, v1")
    a("v_lshrrev_b32 v4, 4, v1")
    a("v_and_b32 v4, 1, v4")
    a("s_and_b32 s41, s49, 1")
    a("s_lshl_b32 s41, s41, 1")
    a("v_or_b32 v4, s41, v4")
    a("v_lshlrev_b32 v4, 1, v4")
    a("v_xor_b32 v4, v4, v3")
    a("s_lshl_b32 s41, s49, 3")
    a("v_add_u32 v5, s41, v2")
    a("v_lshlrev_b32 v5, 10, v5")
    a(f"v_lshl_add_u32 v{V_LW}, v4, 4, v5")
    a("s_mul_i32 s50, s13, 84")
    a("s_sub_u32 s50, s50, 1")
    for k in range(4):
        a(f"s_lshl_b32 s41, s49, 3")
        a(f"s_add_u32 s41, s41, {32 * k}")
        a("v_add_u32 v5, s41, v2")
        a("v_mul_u32_u24 v6, 57, v5")
        a("v_lshrrev_b32 v6, 10, v6")
        a("v_mul_u32_u24 v7, 18, v6")
        a("v_sub_u32 v7, v5, v7")
        a("v_and_b32 v8, 6, v7")
        a("v_xor_b32 v8, v8, v3")
        a("v_lshlrev_b32 v8, 4, v8")
        a("v_mul_u32_u24 v9, 6, v7")
        a("v_add_u32 v9, v9, v6")
        a("v_subrev_u32 v9, 12, v9")
        for typ in range(3):
            delta = 1 if typ == 0 else 0
            taum1 = 9 if typ < 2 else 10
            d = V_LX(typ, k)
            a(f"v_add_u32 v10, s50, v9")
            if delta:
                a("v_subrev_u32 v10, 1, v10")
            if typ < 2:
                a("v_mul_i32_i24 v11, 6, v10")
                a("v_add_u32 v11, s15, v11")
                a("v_lshl_add_u32 v11, v11, 9, v8")
            else:
                a("v_lshl_add_u32 v11, v10, 9, v8")
            a("v_cmp_le_i32 vcc, 0, v10")
            a(f"v_cmp_le_i32 s[52:53], {-taum1}, v9")
            a("s_and_b64 vcc, vcc, s[52:53]")
            a(f"s_mov_b32 s51, 84")
            a(f"v_cmp_ge_i32 s[52:53], s51, v9")
            a("s_and_b64 vcc, vcc, s[52:53]")
            a(f"s_mov_b32 s51, 108")
            a(f"v_cmp_gt_u32 s[52:53], s51, v5")
            a("s_and_b64 vcc, vcc, s[52:53]")
            a(f"v_mov_b32 v12, 0x40000000")
            a("s_nop 1")
            a(f"v_cndmask_b32 v{d}, v12, v11, vcc")
    state = {}
    x_load(a, 0, state)
    for t in range(tau_of(0)):
        w_load(a, 0, t)
    head = {}
    head[1] = 7
    for t in range(head[1]):
        w_load(a, 1, t)
    a(f"s_waitcnt vmcnt({head[1]})")
    a("s_barrier")
    for p in range(NP):
        later = 0
        if p + 1 < NP:
            for t in range(head[p + 1], tau_of(p + 1)):
                w_load(a, p + 1, t)
        if p + 2 < NP:
            h = 7 if p < 1 else tau_of(p - 1) - 3
            h = min(h, tau_of(p + 2))
            head[p + 2] = h
            for t in range(h):
                w_load(a, p + 2, t)
            later += h
        if p % 2 == 0 and p // 2 + 1 < NP // 2:
            x_load(a, p // 2 + 1, state)
            later += 3
        a(f"s_waitcnt vmcnt({later})")
        if not OPT["nobar"]:
            a("s_barrier")

STG = WBASE + 2 * WGRP
STG_PITCH = 144
def emit_epilogue_compute(a):
    a("s_nop 7\ns_nop 3")
    a("v_mov_b32 v16, 0x3e2aaaab")
    for j in range(Q):
        for e in range(4):
            PA, PB, PC, PD, PE = [ACC(sf, j) + e for sf in range(5)]
            a(f"v_add_f32 v17, v{PC}, v{PD}")
            a(f"v_sub_f32 v18, v{PC}, v{PD}")
            a(f"v_add_f32 v19, v{PA}, v{PB}")
            a(f"v_fma_f32 v{PC}, 0.5, v17, -v19")
            a(f"v_sub_f32 v20, v{PE}, v{PA}")
            a(f"v_fma_f32 v20, -4.0, v{PC}, v20")
            a(f"v_mov_b32 v21, 0xc1800000") if (j == 0 and e == 0) else None
            a(f"v_fma_f32 v20, v21, v{PB}, v20")
            a(f"v_sub_f32 v20, v20, v18")
            a(f"v_mul_f32 v{PE}, v16, v20")
            a(f"v_fma_f32 v{PD}, 0.5, v18, -v{PE}")
    a("v_and_b32 v11, 15, v1\nv_lshrrev_b32 v12, 4, v1")
    a("v_add_u32 v13, 4, v11\nv_cmp_gt_u32 vcc, 4, v11\ns_nop 1\nv_cndmask_b32 v13, v13, v11, vcc")
    a("v_subrev_u32 v14, 8, v11\nv_cmp_lt_u32 vcc, 11, v11\ns_nop 1\nv_cndmask_b32 v13, v13, v14, vcc")
    a("v_subrev_u32 v14, 1, v13")
    a("v_max_i32 v14, 0, v14")
    a("v_subrev_u32 v15, 4, v14")
    a("v_add_u32 v22, 8, v14")
    a("v_cmp_gt_u32 vcc, 8, v14\ns_nop 1\nv_cndmask_b32 v15, v15, v22, vcc")
    a("v_cmp_gt_u32 vcc, 4, v14\ns_nop 1\nv_cndmask_b32 v15, v15, v14, vcc")
    a("v_lshl_add_u32 v15, v12, 4, v15")
    a("v_lshlrev_b32 v15, 2, v15")
    for e in range(4):
        a(f"ds_bpermute_b32 v{24+e}, v15, v{ACC(4,5)+e}")
        a(f"ds_bpermute_b32 v{28+e}, v15, v{ACC(1,5)+e}")
    a(f"v_mul_u32_u24 v22, {18 * STG_PITCH}, v13")
    a("v_lshl_add_u32 v22, v12, 3, v22")
    a("s_lshl_b32 s41, s16, 5")
    a(f"s_add_u32 s41, s41, {STG}")
    a("v_add_u32 v22, s41, v22")
    a("s_cmp_lt_u32 s10, 4")
    a("s_mov_b32 s55, 0xbfb8aa3b")
    a("s_cselect_b32 s52, 0xc038aa3b, s55")
    a("s_cselect_b32 s53, 2.0, 1.0")
    a("s_cselect_b32 s54, -1.0, 0")
    a("v_mov_b32 v23, s54")
    a("s_waitcnt lgkmcnt(0)")
    for j in range(Q):
        for k in range(3):
            ys = []
            for e in range(4):
                t = 32 + e
                if k == 0:
                    prev = (ACC(4, j - 1) + e) if j > 0 else 24 + e
                    a(f"v_add_f32 v{t}, v{ACC(0, j) + e}, v{prev}")
                elif k == 1:
                    prev = (ACC(1, j - 1) + e) if j > 0 else 28 + e
                    a(f"v_add_f32 v{t}, v{ACC(3, j) + e}, v{prev}")
                src = t if k < 2 else ACC(2, j) + e
                a(f"v_mul_f32 v{t}, s52, v{src}")
            for e in range(4):
                a(f"v_exp_f32 v{32+e}, v{32+e}")
            for e in range(4):
                a(f"v_add_f32 v{32+e}, 1.0, v{32+e}")
            for e in range(4):
                a(f"v_rcp_f32 v{32+e}, v{32+e}")
            a("s_nop 0")
            for e in range(4):
                a(f"v_fma_f32 v{32+e}, s53, v{32+e}, v23")
            a("v_cvt_pk_bf16_f32 v36, v32, v33")
            a("v_cvt_pk_bf16_f32 v37, v34, v35")
            a(f"ds_write_b64 v22, v[36:37] offset:{(3 * j + k) * STG_PITCH}")
    a("s_waitcnt lgkmcnt(0)")

def emit_store_all(a):
    a("s_barrier")
    a(f"s_add_u32 s{S_ACT}, s8, {ACT_OFF}")
    a(f"s_addc_u32 s{S_ACT+1}, s9, 0")
    a(f"s_mov_b32 s{S_ACT+2}, {ACT_BYTES}")
    a(f"s_mov_b32 s{S_ACT+3}, 0x20000")
    a("s_mul_i32 s41, s13, 252")
    a("s_sub_u32 s41, s41, 1")
    a("s_mul_i32 s42, s14, 4000")
    a("s_add_u32 s42, s42, s15")
    a("s_lshl_b32 s43, s10, 7")
    for it in range(4):
        a(f"v_add_u32 v40, {it * 512}, v0")
        a("v_lshrrev_b32 v41, 3, v40")
        a("v_and_b32 v42, 7, v40")
        a(f"v_mul_u32_u24 v43, {STG_PITCH}, v41")
        a("v_lshl_add_u32 v43, v42, 4, v43")
        a(f"ds_read_b128 v[{48+it*4}:{51+it*4}], v43 offset:{STG + 3 * STG_PITCH}") if STG + 3*STG_PITCH < 65536 else (
            a(f"v_add_u32 v43, {STG + 3 * STG_PITCH}, v43"), a(f"ds_read_b128 v[{48+it*4}:{51+it*4}], v43"))
        a("v_add_u32 v44, s41, v41")
        a("v_lshlrev_b32 v45, 1, v44")
        a("v_add_u32 v45, s42, v45")
        a("v_lshlrev_b32 v45, 10, v45")
        a("v_lshl_add_u32 v45, v42, 4, v45")
        a("v_add_u32 v45, s43, v45")
        a("v_cmp_le_i32 vcc, 0, v44")
        a("s_mov_b32 s51, 2000")
        a("v_cmp_gt_i32 s[52:53], s51, v44")
        a("s_and_b64 vcc, vcc, s[52:53]")
        a("s_mov_b32 s51, 252")
        a("v_cmp_gt_u32 s[52:53], s51, v41")
        a("s_and_b64 vcc, vcc, s[52:53]")
        a("v_mov_b32 v46, 0x40000000")
        a("s_nop 1")
        a(f"v_cndmask_b32 v{64+it}, v46, v45, vcc")
    a("s_waitcnt lgkmcnt(0)")
    for it in range(4):
        a(f"buffer_store_dwordx4 v[{48+it*4}:{51+it*4}], v{64+it}, s[{S_ACT}:{S_ACT+3}], 0 offen")
    a("s_waitcnt vmcnt(0)")

def emit_k2(a, name, stamps=False):
    kernel_header(a, name)
    a("s_cmp_ge_u32 s2, 256")
    a(f"s_cbranch_scc1 L_{name}_end")
    a("s_load_dwordx4 s[4:7], s[0:1], 0")
    a("s_load_dwordx2 s[8:9], s[0:1], 40")
    a("s_and_b32 s10, s2, 7")
    a("s_lshr_b32 s11, s2, 3")
    a("s_lshr_b32 s12, s11, 3")
    a("s_and_b32 s13, s11, 7")
    a("s_lshr_b32 s14, s12, 1")
    a("s_and_b32 s15, s12, 1")
    a("v_lshrrev_b32 v1, 6, v0")
    a("s_nop 0")
    a("v_readfirstlane_b32 s16, v1")
    a("s_waitcnt lgkmcnt(0)")
    a("s_mul_i32 s41, s14, 2048000")
    a(f"s_add_u32 s{S_XRAW}, s4, s41")
    a(f"s_addc_u32 s{S_XRAW+1}, s5, 0")
    a(f"s_mov_b32 s{S_XRAW+2}, 2048000")
    a(f"s_mov_b32 s{S_XRAW+3}, 0x20000")
    a(f"s_mov_b32 s{S_WRAW}, s6\ns_mov_b32 s{S_WRAW+1}, s7\ns_mov_b32 s{S_WRAW+2}, 8126464\ns_mov_b32 s{S_WRAW+3}, 0x20000")
    a(f"s_add_u32 s{S_WD}, s8, {WD_OFF}\ns_addc_u32 s{S_WD+1}, s9, 0\ns_mov_b32 s{S_WD+2}, {WD_BYTES}\ns_mov_b32 s{S_WD+3}, 0x20000")
    a(f"s_mov_b32 s{S_XDER}, s8\ns_mov_b32 s{S_XDER+1}, s9\ns_mov_b32 s{S_XDER+2}, {XD_VALID}\ns_mov_b32 s{S_XDER+3}, 0x20000")
    if stamps:
        a("s_memtime s[60:61]\ns_memrealtime s[62:63]")
    a("s_cmp_ge_u32 s16, 4")
    a(f"s_cbranch_scc1 L_{name}_loader")
    if OPT["prio"] is not None:
        a(f"s_setprio {OPT['prio']}")
    emit_compute(a, stamps=stamps)
    if stamps:
        a("s_memtime s[64:65]\ns_memrealtime s[66:67]")
    emit_epilogue_compute(a)
    a(f"s_branch L_{name}_store")
    a.label(f"L_{name}_loader")
    if OPT["lprio"] is not None:
        a(f"s_setprio {OPT['lprio']}")
    emit_loader(a)
    a.label(f"L_{name}_store")
    emit_store_all(a)
    if stamps:
        a("s_memtime s[68:69]\ns_memrealtime s[70:71]\ns_waitcnt lgkmcnt(0)")
        a("s_cmp_lg_u32 s16, 0")
        a(f"s_cbranch_scc1 L_{name}_end")
        a("s_sub_u32 s64, s64, s60\ns_sub_u32 s68, s68, s60")
        a("v_mov_b32 v4, s64\nv_mov_b32 v5, s68\nv_mov_b32 v6, s62\nv_mov_b32 v7, s70")
        for i in range(5):
            a(f"s_sub_u32 s{76+2*i}, s{76+2*i}, s60")
            a(f"v_mov_b32 v{8+i}, s{76+2*i}")
        a("s_lshl_b32 s41, s2, 6\ns_add_u32 s41, s41, 0x4000000")
        a("v_mov_b32 v3, s41")
        a("s_mov_b32 s72, s8\ns_mov_b32 s73, s9\ns_mov_b32 s74, 0x10000000\ns_mov_b32 s75, 0x20000")
        a("v_cmp_eq_u32 vcc, 0, v0\ns_and_saveexec_b64 s[56:57], vcc")
        a(f"s_cbranch_execz L_{name}_end")
        a("buffer_store_dwordx4 v[4:7], v3, s[72:75], 0 offen")
        a("buffer_store_dwordx4 v[8:11], v3, s[72:75], 0 offen offset:16")
        a("buffer_store_dword v12, v3, s[72:75], 0 offen offset:32")
        a("s_waitcnt vmcnt(0)")
    a.label(f"L_{name}_end")
    a("s_endpgm")

def build_k2_only(stamps=True):
    a = Asm()
    name = "standalone__autoregressive_conv_wavenet__speech_kernel"
    hdr = f"; @launch grid=(256,1,1) block=(512,1,1) lds={LDS_BYTES}\n.amdgcn_target \"amdgcn-amd-amdhsa--gfx950\"\n.text\n"
    emit_k2(a, name, stamps)
    return hdr + a.text() + '.section .rodata,"a"\n.p2align 6\n' + kernel_desc(name, 256, 102, 256)
```

```python
from asmlib import *
import k2
ZB = 131072
ZP = 528
S_WO, S_ACT, S_OUT = 20, 24, 28

def emit_wo_dma(a, wave_s, nwaves=8):
    a("v_and_b32 v2, 63, v0")
    a("v_lshrrev_b32 v3, 5, v2")
    a("v_and_b32 v4, 31, v2")
    if nwaves == 8:
        a(f"s_and_b32 s40, s{wave_s}, 1\ns_lshl_b32 s40, s40, 1")
        a(f"s_lshr_b32 s41, s{wave_s}, 2\ns_and_b32 s41, s41, 1\ns_lshl_b32 s41, s41, 2\ns_or_b32 s40, s40, s41")
        a("v_or_b32 v5, s40, v3")
        a("v_lshlrev_b32 v5, 1, v5")
        a("v_xor_b32 v4, v4, v5")
        a(f"s_lshl_b32 s41, s{wave_s}, 1")
        a("v_add_u32 v3, s41, v3")
        a("v_lshlrev_b32 v3, 9, v3")
        a("v_lshl_add_u32 v6, v4, 4, v3")
        a(f"s_lshl_b32 s42, s{wave_s}, 10")
        for n in range(16):
            a(f"s_add_u32 m0, s42, {n * 8192}")
            a(f"s_mov_b32 s43, {n * 8192}")
            a(f"buffer_load_dwordx4 v6, s[{S_WO}:{S_WO+3}], s43 offen lds")
    else:
        raise NotImplementedError

def emit_rowmap(a):
    a("s_mul_i32 s44, s13, 252")
    a("s_lshl_b32 s45, s10, 5")
    a("s_add_u32 s44, s44, s45")
    a("s_sub_u32 s44, s44, 1")
    a("s_mul_i32 s45, s14, 4000")
    a("s_add_u32 s45, s45, s15")

def emit_row_global(a, vr, vout, vtmp):
    a(f"v_add_u32 v{vtmp}, s44, v{vr}")
    a(f"v_lshlrev_b32 v{vout}, 1, v{vtmp}")
    a(f"v_add_u32 v{vout}, s45, v{vout}")
    a(f"v_cmp_le_i32 vcc, 0, v{vtmp}")
    a("s_mov_b32 s46, 2000")
    a(f"v_cmp_gt_i32 s[48:49], s46, v{vtmp}")
    a("s_and_b64 vcc, vcc, s[48:49]")
    a("s_lshl_b32 s46, s10, 5")
    a("s_sub_u32 s46, 252, s46")
    a(f"v_cmp_gt_i32 s[48:49], s46, v{vr}")
    a("s_and_b64 vcc, vcc, s[48:49]")

def emit_z_load(a, sc=""):
    for it in range(2):
        a(f"v_add_u32 v7, {it * 512}, v0")
        a(f"v_lshrrev_b32 v{24+it}, 5, v7")
        a(f"v_and_b32 v{26+it}, 31, v7")
        emit_row_global(a, 24 + it, 28, 29)
        a(f"v_lshlrev_b32 v28, 10, v28")
        a(f"v_lshl_add_u32 v28, v{26+it}, 4, v28")
        a("v_mov_b32 v29, 0x40000000")
        a("s_nop 0")
        a(f"v_cndmask_b32 v{30+it}, v29, v28, vcc")
        a(f"buffer_load_dwordx4 v[{8+8*it}:{11+8*it}], v{30+it}, s[{S_ACT}:{S_ACT+3}], 0 offen {sc}")
        a(f"buffer_load_dwordx4 v[{12+8*it}:{15+8*it}], v{30+it}, s[{S_ACT}:{S_ACT+3}], 0 offen offset:512 {sc}")

def emit_z_compute(a):
    for it in range(2):
        F = 8 + 8 * it; G = 12 + 8 * it
        for d in range(4):
            a(f"v_lshlrev_b32 v32, 16, v{F+d}")
            a(f"v_and_b32 v33, 0xffff0000, v{F+d}")
            a(f"v_lshlrev_b32 v34, 16, v{G+d}")
            a(f"v_and_b32 v35, 0xffff0000, v{G+d}")
            a("v_mul_f32 v32, v32, v34")
            a("v_mul_f32 v33, v33, v35")
            a(f"v_cvt_pk_bf16_f32 v{F+d}, v32, v33")
        a(f"v_mul_u32_u24 v36, {ZP}, v{24+it}")
        a(f"v_lshl_add_u32 v36, v{26+it}, 4, v36")
        a(f"v_add_u32 v36, {ZB}, v36")
        a(f"ds_write_b128 v36, v[{F}:{F+3}]")

def emit_gemm_store(a, wave_s):
    T = LgkmTracker(a)
    a("v_and_b32 v2, 63, v0")
    a("v_and_b32 v3, 15, v2")
    a("v_lshrrev_b32 v4, 4, v2")
    a("v_lshrrev_b32 v5, 2, v3")
    a("v_and_b32 v6, 1, v4")
    a("v_lshl_or_b32 v6, v6, 2, v5")
    a("v_lshl_add_u32 v5, v4, 3, v5")
    a("v_lshlrev_b32 v5, 9, v5")
    a("v_lshrrev_b32 v7, 1, v3")
    a("v_and_b32 v7, 1, v7")
    a("v_and_b32 v8, 1, v3")
    a("v_lshl_add_u32 v5, v8, 3, v5")
    for o in range(2):
        a(f"s_lshl_b32 s40, s{wave_s}, 1")
        a(f"s_add_u32 s40, s40, {o}")
        a(f"v_xor_b32 v9, s40, v6")
        a(f"v_lshl_add_u32 v9, v9, 1, v7")
        a(f"v_lshl_add_u32 v{10+2*o}, v9, 4, v5")
        a(f"v_add_u32 v{11+2*o}, 0x10000, v{10+2*o}")
    a(f"v_mul_u32_u24 v14, {ZP}, v3")
    a("v_lshl_add_u32 v14, v4, 4, v14")
    a(f"v_add_u32 v14, {ZB}, v14")
    for r in range(16, 32):
        a(f"v_mov_b32 v{r}, 0")
    pend = {}
    def issue(ks):
        base = 32 + (ks % 3) * 16
        off = (ks % 4) * 16384
        hi = ks // 4
        ids = []
        for o in range(2):
            v = 10 + 2 * o + hi
            ids.append(T.issue(f"ds_read_b64_tr_b16 v[{base+4*o}:{base+4*o+1}], v{v} offset:{off}"))
            ids.append(T.issue(f"ds_read_b64_tr_b16 v[{base+4*o+2}:{base+4*o+3}], v{v} offset:{off + 2048}"))
        for rt in range(2):
            ids.append(T.issue(f"ds_read_b128 v[{base+8+4*rt}:{base+8+4*rt+3}], v14 offset:{rt * 16 * ZP + ks * 64}"))
        pend[ks] = ids
    issue(0); issue(1)
    for ks in range(8):
        if ks + 2 < 8:
            issue(ks + 2)
        T.wait_for(pend[ks][-1])
        base = 32 + (ks % 3) * 16
        for o in range(2):
            for rt in range(2):
                c = 16 + (o * 2 + rt) * 4
                a(f"v_mfma_f32_16x16x32_bf16 v[{c}:{c+3}], v[{base+4*o}:{base+4*o+3}], v[{base+8+4*rt}:{base+8+4*rt+3}], v[{c}:{c+3}]")
    a("s_nop 7\ns_nop 1")
    for rt in range(2):
        a(f"v_add_u32 v80, {rt * 16}, v3")
        emit_row_global(a, 80, 81, 82)
        a("v_lshlrev_b32 v81, 9, v81")
        a("v_lshl_add_u32 v81, v4, 3, v81")
        a(f"s_lshl_b32 s40, s{wave_s}, 6")
        a("v_add_u32 v81, s40, v81")
        a("v_mov_b32 v82, 0x40000000")
        a("s_nop 0")
        a("v_cndmask_b32 v81, v82, v81, vcc")
        for o in range(2):
            c = 16 + (o * 2 + rt) * 4
            a(f"v_cvt_pk_bf16_f32 v84, v{c}, v{c+1}")
            a(f"v_cvt_pk_bf16_f32 v85, v{c+2}, v{c+3}")
            a(f"buffer_store_dwordx2 v[84:85], v81, s[{S_OUT}:{S_OUT+3}], 0 offen offset:{o * 32}")
            a("s_nop 1")

def emit_k3(a, name):
    kernel_header(a, name)
    a("s_cmp_ge_u32 s2, 256")
    a(f"s_cbranch_scc1 L_{name}_end")
    a("s_load_dwordx4 s[4:7], s[0:1], 16")
    a("s_load_dwordx2 s[8:9], s[0:1], 40")
    a("s_and_b32 s10, s2, 7")
    a("s_lshr_b32 s11, s2, 3")
    a("s_lshr_b32 s12, s11, 3")
    a("s_and_b32 s13, s11, 7")
    a("s_lshr_b32 s14, s12, 1")
    a("s_and_b32 s15, s12, 1")
    a("v_lshrrev_b32 v1, 6, v0")
    a("s_nop 0")
    a("v_readfirstlane_b32 s16, v1")
    a("s_waitcnt lgkmcnt(0)")
    a(f"s_mov_b32 s{S_WO}, s4\ns_mov_b32 s{S_WO+1}, s5\ns_mov_b32 s{S_WO+2}, 131072\ns_mov_b32 s{S_WO+3}, 0x20000")
    a(f"s_add_u32 s{S_ACT}, s8, {k2.ACT_OFF}\ns_addc_u32 s{S_ACT+1}, s9, 0\ns_mov_b32 s{S_ACT+2}, {k2.ACT_BYTES}\ns_mov_b32 s{S_ACT+3}, 0x20000")
    a(f"s_mov_b32 s{S_OUT}, s6\ns_mov_b32 s{S_OUT+1}, s7\ns_mov_b32 s{S_OUT+2}, 4096000\ns_mov_b32 s{S_OUT+3}, 0x20000")
    emit_rowmap(a)
    emit_z_load(a)
    emit_wo_dma(a, 16)
    a("s_waitcnt vmcnt(16)")
    emit_z_compute(a)
    a("s_waitcnt vmcnt(0) lgkmcnt(0)")
    a("s_barrier")
    emit_gemm_store(a, 16)
    a("s_waitcnt vmcnt(0)")
    a.label(f"L_{name}_end")
    a("s_endpgm")
```

```python
import sys
sys.path.insert(0, "gen")
from asmlib import *
import k1, k2, k3
HDR = """; Kernarg layout for this problem (48 bytes, ptrs only, base s[0:1]):
"""
def build(stamps=False):
    a = Asm()
    k1.emit_k1(a, "prep_kernel")
    k2.emit_k2(a, "conv_kernel", stamps)
    k3.emit_k3(a, "proj_kernel")
    s = HDR
    s += "; @launch kernel=prep_kernel grid=(1040,1,1) block=(256,1,1) lds=0\n"
    s += f"; @launch kernel=conv_kernel grid=(256,1,1) block=(512,1,1) lds={k2.LDS_BYTES}\n"
    s += f"; @launch kernel=proj_kernel grid=(256,1,1) block=(512,1,1) lds={k2.LDS_BYTES}\n"
    s += '.amdgcn_target "amdgcn-amd-amdhsa--gfx950"\n.text\n'
    s += a.text()
    s += '.section .rodata,"a"\n.p2align 6\n' + kernel_desc("prep_kernel", 48, 32, 48)
    s += '.p2align 6\n' + kernel_desc("conv_kernel", 256, 102, 256)
    s += '.p2align 6\n' + kernel_desc("proj_kernel", 128, 64, 128)
    return s
if __name__ == "__main__":
    out = sys.argv[1] if len(sys.argv) > 1 else "standalone__autoregressive_conv_wavenet__speech.s"
    open(out, "w").write(build())
    print("wrote", out)
```
